```python
import torch

def _softmax(x, axis=-1):
    return torch.softmax(x, dim=axis)
def _gelu(x):
    return torch.nn.functional.gelu(x, approximate="tanh")
def _silu(x):
    return torch.nn.functional.silu(x)
def _sigmoid(x):
    return torch.sigmoid(x)
def _layernorm(x, axis=-1, eps=1e-5):
    m = x.mean(dim=axis, keepdim=True)
    v = x.var(dim=axis, keepdim=True, unbiased=False)
    return (x - m) / torch.sqrt(v + eps)
def _scatter_add(tgt, idx, src, axis=0):
    return tgt.clone().index_add_(axis, idx, src)
def _segment_sum(src, seg, n):
    out = torch.zeros((n,) + src.shape[1:], dtype=src.dtype)
    return out.index_add_(0, seg, src)
def _pad(x, pw):
    flat = tuple(v for pair in reversed(pw) for v in pair)
    return torch.nn.functional.pad(x, flat)

kernel_name = 'interleave_layers__ssm_conv_h3__linear_kernel_hedgehog__prompt'

def setup_inputs():

    _w = (lambda a: (lambda t: t.to(torch.bfloat16) if t.is_floating_point() else t)(torch.as_tensor(a)))
    def _A_setup():
        B, S, D = 1, 2048, 512
        ks = 4
        return {
            "q": _w((lambda *s: torch.randn(*s, dtype=torch.bfloat16) * 0.05)(B, S, D)),
            "k": _w((lambda *s: torch.randn(*s, dtype=torch.bfloat16) * 0.8)(B, S, D)),
            "v": _w((lambda *s: torch.randn(*s, dtype=torch.bfloat16) * 0.8)(B, S, D)),
            "shift_k": _w((lambda *s: torch.randn(*s, dtype=torch.bfloat16) * 0.8)(D, ks) * 0.5),
            "ssm_k": _w((lambda *s: torch.randn(*s, dtype=torch.bfloat16) * 0.8)(D, S) * (1.0 / S ** 0.5)),
            "ssm_D": _w((lambda *s: torch.randn(*s, dtype=torch.bfloat16) * 0.8)(D)),
        }
    _A_in = _A_setup()

    def _B_setup():
        B, S, D, H = 1, 2048, 512, 32
        Dh = D // H
        return {
            "x": _w((lambda *s: torch.randn(*s, dtype=torch.bfloat16) * 0.05)(B, S, D)),
            "wqkv": _w((lambda *s: torch.randn(*s, dtype=torch.bfloat16) * 0.4)(D, 3 * D)),
            "w_phi": _w((lambda *s: torch.randn(*s, dtype=torch.bfloat16) * 0.4)(H, Dh, Dh) * (Dh ** -0.5)),
            "wo": _w((lambda *s: torch.randn(*s, dtype=torch.bfloat16) * 0.2)(D, D)),
        }
    _B_in = _B_setup()

    return {
        "A_q": _A_in["q"],
        "A_k": _A_in["k"],
        "A_v": _A_in["v"],
        "A_shift_k": _A_in["shift_k"],
        "A_ssm_k": _A_in["ssm_k"],
        "A_ssm_D": _A_in["ssm_D"],
        "B_x": _B_in["x"],
        "B_wqkv": _B_in["wqkv"],
        "B_w_phi": _B_in["w_phi"],
        "B_wo": _B_in["wo"],
    }

def reference(A_q, A_k, A_v, A_shift_k, A_ssm_k, A_ssm_D, B_x, B_wqkv, B_w_phi, B_wo):
    def _A_ref(q, k, v, shift_k, ssm_k, ssm_D):
        B, S, D = q.shape
        ks = shift_k.shape[-1]
        k_pad = _pad(k, ((0, 0), (ks - 1, 0), (0, 0)))
        k_shift = torch.zeros_like(k)
        for t in range(ks):
            k_shift = k_shift + k_pad[:, t:t + S, :] * shift_k[:, ks - 1 - t][None, None, :]
        kv = k_shift * v
        L = 2 * S
        kv_pad = _pad(kv, ((0, 0), (0, S), (0, 0)))
        kf_pad = _pad(ssm_k, ((0, 0), (0, S)))
        kv_f = (lambda x, axes=(-2,-1): torch.fft.rfft2(x.float(), dim=axes))(kv_pad[:, None, :, :], axes=(1, 2))
        kf_f = (lambda x, axes=(-2,-1): torch.fft.rfft2(x.float(), dim=axes))(kf_pad[:, None, :], axes=(1, 2))
        kf_f = (lambda x, *d: x.permute(*d))(kf_f, 1, 2, 0)
        y_f = kv_f * kf_f[None, :, :, :]
        y = (lambda x, s, axes=(-2,-1): torch.fft.irfft2(x, s=s, dim=axes).to(torch.bfloat16))(y_f, (1, L), axes=(1, 2))[:, 0, :S, :]
        y = y + kv * ssm_D[None, None, :]
        return q * y

    def _B_ref(x, wqkv, w_phi, wo):
        B, S, D = x.shape
        H = 32; Dh = D // H
        qkv = (lambda x, *d: x.permute(*d))((x @ wqkv).reshape(B, S, 3, H, Dh), 2, 0, 3, 1, 4)
        q, k, v = qkv[0], qkv[1], qkv[2]
        pq = torch.einsum("bhsd,hdf->bhsf", q, w_phi)
        pk = torch.einsum("bhsd,hdf->bhsf", k, w_phi)
        phi_q = torch.concatenate([_softmax(pq, axis=-1), _softmax(-pq, axis=-1)], axis=-1)
        phi_k = torch.concatenate([_softmax(pk, axis=-1), _softmax(-pk, axis=-1)], axis=-1)
        kv = torch.einsum("bhsf,bhsd->bhfd", phi_k, v)
        z  = torch.einsum("bhsf->bhf", phi_k)
        num = torch.einsum("bhqf,bhfd->bhqd", phi_q, kv)
        den = torch.einsum("bhqf,bhf->bhq", phi_q, z)[..., None] + 1e-6
        o = num / den
        return (lambda x, *d: x.permute(*d))(o, 0, 2, 1, 3).reshape(B, S, D) @ wo

    x = A_q
    x = x + _A_ref(_layernorm(x, axis=-1), A_k, A_v, A_shift_k, A_ssm_k, A_ssm_D)
    x = x + _B_ref(_layernorm(x, axis=-1), B_wqkv, B_w_phi, B_wo)
    x = x + _A_ref(_layernorm(x, axis=-1), A_k, A_v, A_shift_k, A_ssm_k, A_ssm_D)
    x = x + _B_ref(_layernorm(x, axis=-1), B_wqkv, B_w_phi, B_wo)
    return x
```

```python
NAME = "interleave_layers__ssm_conv_h3__linear_kernel_hedgehog__prompt"
MB = 1 << 20
URT, X0T, ST0, WP, CS, WOP = 0, 2*MB, 4*MB, 5*MB, 7*MB, 8*MB
YT, X1T, X3T, XR1, XR3, PQ = 9*MB, 11*MB, 13*MB, 15*MB, 17*MB, 20*MB
STATE1, STATE2, XCH = 24*MB, 24*MB + 128*1024, 25*MB
WS_BYTES = 32*MB
class Asm:
    def __init__(self): self.l = []
    def __call__(self, s):
        for x in s.strip("\n").split("\n"): self.l.append("    " + x.strip() if not x.strip().endswith(":") else x.strip())
    def text(self): return "\n".join(self.l) + "\n"
def srd(a, d, lo, nbytes):
    a(f"s_mov_b32 s{d}, s{lo}\ns_mov_b32 s{d+1}, s{lo+1}\ns_mov_b32 s{d+2}, {nbytes}\ns_mov_b32 s{d+3}, 0x20000")
def vr(b, n): return f"v[{b}:{b+n-1}]"
def header(a, name):
    a.l.append(f".globl {name}\n.p2align 8\n.type {name},@function\n{name}:")
def desc(name, vgpr, sgpr=96, accum=None):
    acc = accum if accum else (vgpr + 3)//4*4
    return f""".p2align 6
.amdhsa_kernel {name}
  .amdhsa_next_free_vgpr {vgpr}
  .amdhsa_next_free_sgpr {sgpr}
  .amdhsa_accum_offset {acc}
  .amdhsa_group_segment_fixed_size 0
  .amdhsa_kernarg_size 104
  .amdhsa_user_sgpr_count 2
  .amdhsa_user_sgpr_kernarg_segment_ptr 1
  .amdhsa_system_sgpr_workgroup_id_x 1
.end_amdhsa_kernel
"""
import os
STAMP = int(os.environ.get("STAMP", "0"))
def stamp(a, i):
    if STAMP: a(f"s_memtime s[70:71]\ns_waitcnt lgkmcnt(0)\ns_mov_b32 s{72+i}, s70")
def stamp_begin(a):
    if STAMP: a("s_memrealtime s[70:71]\ns_waitcnt lgkmcnt(0)\ns_mov_b32 s88, s70"); stamp(a, 0)
def stamp_end(a, n, wg=0):
    if not STAMP: return
    a("s_waitcnt vmcnt(0)"); stamp(a, n)
    lab = f"STE{len(a.l)}"
    a(f"s_memrealtime s[70:71]\ns_load_dwordx2 s[64:65], s[0:1], 88\ns_waitcnt lgkmcnt(0)\ns_mov_b32 s89, s70\ns_mov_b32 s66, 256\ns_mov_b32 s67, 0x20000\ns_mov_b64 exec, -1\nv_cmp_eq_u32 vcc, 0, v0\ns_cmp_lg_u32 s2, {wg}\ns_cbranch_scc1 {lab}\ns_and_saveexec_b64 s[68:69], vcc\ns_cbranch_execz {lab}\nv_mov_b32 v1, 0")
    for i in list(range(n+1)) + [14, 16, 17]:
        a(f"v_mov_b32 v2, s{72+i}\nbuffer_store_dword v2, v1, s[64:67], 0 offen offset:{4*i}")
    a(f"{lab}:")
```

```python
from common import *
def k1(a, name):
    header(a, name)
    a("""s_cmp_ge_u32 s2, 384
    s_cbranch_scc1 K1_DONE
    s_load_dwordx4 s[4:7], s[0:1], 0
    s_load_dwordx4 s[8:11], s[0:1], 16
    s_load_dwordx4 s[12:15], s[0:1], 56
    s_load_dwordx2 s[16:17], s[0:1], 72
    s_load_dwordx2 s[18:19], s[0:1], 96
    s_waitcnt lgkmcnt(0)""")
    stamp_begin(a)
    srd(a, 20, 18, WS_BYTES)
    a("""s_cmp_ge_u32 s2, 320
    s_cbranch_scc1 K1_PACK
    s_cmp_ge_u32 s2, 256
    s_cbranch_scc1 K1_STATS""")
    srd(a, 24, 4, 2*MB); srd(a, 28, 6, 2*MB); srd(a, 32, 8, 2*MB); srd(a, 36, 10, 4096)
    a("""s_and_b32 s40, s2, 7
    s_lshr_b32 s41, s2, 3
    v_and_b32 v1, 7, v0
    v_lshrrev_b32 v2, 3, v0
    s_lshl_b32 s42, s41, 16
    s_lshl_b32 s43, s40, 7
    s_add_u32 s42, s42, s43
    v_lshlrev_b32 v3, 11, v2
    v_lshl_add_u32 v3, v1, 4, v3
    v_add_u32 v3, s42, v3
    v_add_u32 v4, 0xfffff400, v3
    v_add_u32 v5, 0xfffff800, v3
    v_add_u32 v6, 0xfffffc00, v3
    buffer_load_dwordx4 v[8:11], v4, s[28:31], 0 offen
    buffer_load_dwordx4 v[12:15], v5, s[28:31], 0 offen
    buffer_load_dwordx4 v[16:19], v6, s[28:31], 0 offen
    buffer_load_dwordx4 v[20:23], v3, s[28:31], 0 offen
    buffer_load_dwordx4 v[24:27], v3, s[28:31], 0 offen offset:1024
    s_lshl_b32 s43, s40, 9
    v_lshlrev_b32 v7, 6, v1
    v_add_u32 v7, s43, v7""")
    for i in range(4): a(f"buffer_load_dwordx4 {vr(44+4*i,4)}, v7, s[36:39], 0 offen offset:{16*i}")
    a("""buffer_load_dwordx4 v[28:31], v3, s[32:35], 0 offen
    buffer_load_dwordx4 v[32:35], v3, s[32:35], 0 offen offset:1024
    buffer_load_dwordx4 v[36:39], v3, s[24:27], 0 offen
    buffer_load_dwordx4 v[40:43], v3, s[24:27], 0 offen offset:1024
    v_lshlrev_b32 v60, 2, v1
    v_sub_u32 v61, 31, v2
    v_xor_b32 v61, v61, v60
    v_xor_b32 v62, v2, v60
    v_lshlrev_b32 v60, 10, v1
    v_lshl_add_u32 v61, v61, 2, v60
    v_lshl_add_u32 v62, v62, 2, v60
    s_mov_b32 s44, 0xffff0000
    s_mov_b32 s45, 0x05040100
    s_mov_b32 s46, 0x07060302
    s_waitcnt vmcnt(2)""")
    stamp(a, 1)
    for e in range(8):
        hi = e & 1; dw = e >> 1
        def unp(dst, src): a(f"v_and_b32 v{dst}, s44, v{src}" if hi else f"v_lshlrev_b32 v{dst}, 16, v{src}")
        for r in range(5): unp(64+r, 8+4*r+dw)
        a(f"v_lshlrev_b32 v70, 16, v{44+2*e}\nv_and_b32 v71, s44, v{44+2*e}\nv_lshlrev_b32 v72, 16, v{45+2*e}\nv_and_b32 v73, s44, v{45+2*e}")
        unp(74, 28+dw); unp(75, 32+dw)
        a("""v_mul_f32 v76, v73, v64
        v_mul_f32 v77, v73, v65
        v_fmac_f32 v76, v72, v65
        v_fmac_f32 v77, v72, v66
        v_fmac_f32 v76, v71, v66
        v_fmac_f32 v77, v71, v67
        v_fmac_f32 v76, v70, v67
        v_fmac_f32 v77, v70, v68
        v_mul_f32 v76, v76, v74
        v_mul_f32 v77, v77, v75""")
        a(f"v_cvt_pk_bf16_f32 v78, v77, v76\nds_write_b32 v61, v78 offset:{128*e}")
    a("s_waitcnt vmcnt(0)")
    for e in range(8):
        dw = e >> 1
        a(f"v_perm_b32 v{64+e}, v{40+dw}, v{36+dw}, s{46 if e&1 else 45}\nds_write_b32 v62, v{64+e} offset:{8192+128*e}")
    stamp(a, 2)
    a("""v_lshrrev_b32 v4, 6, v0
    v_xor_b32 v5, v1, v4
    v_lshlrev_b32 v6, 7, v2
    v_lshl_add_u32 v5, v5, 4, v6
    v_xor_b32 v6, 64, v5
    s_lshl_b32 s43, s40, 18
    s_lshl_b32 s42, s41, 7
    v_lshlrev_b32 v7, 12, v2
    v_lshl_add_u32 v7, v1, 4, v7
    v_add_u32 v7, s43, v7
    v_add_u32 v8, 0x20000, v7
    s_sub_u32 s47, 3968, s42""")
    a(f"s_add_u32 s48, s42, {X0T}")
    a("""s_waitcnt lgkmcnt(0)
    s_barrier
    ds_read_b128 v[12:15], v5
    ds_read_b128 v[16:19], v6 offset:4096
    ds_read_b128 v[20:23], v5 offset:8192
    ds_read_b128 v[24:27], v6 offset:12288
    s_waitcnt lgkmcnt(3)
    buffer_store_dwordx4 v[12:15], v7, s[20:23], s47 offen
    s_waitcnt lgkmcnt(2)
    buffer_store_dwordx4 v[16:19], v8, s[20:23], s47 offen
    s_waitcnt lgkmcnt(1)
    buffer_store_dwordx4 v[20:23], v7, s[20:23], s48 offen
    s_waitcnt lgkmcnt(0)
    buffer_store_dwordx4 v[24:27], v8, s[20:23], s48 offen""")
    stamp_end(a, 3)
    a("s_endpgm")
    a("K1_STATS:")
    srd(a, 24, 4, 2*MB)
    a("""s_sub_u32 s40, s2, 256
    v_lshrrev_b32 v1, 3, v0
    v_and_b32 v2, 7, v0
    s_lshl_b32 s41, s40, 15
    v_lshlrev_b32 v3, 10, v1
    v_lshl_add_u32 v3, v2, 4, v3""")
    for i in range(8): a(f"buffer_load_dwordx4 {vr(8+4*i,4)}, v3, s[24:27], s41 offen offset:{128*i}")
    a(f"""s_lshl_b32 s42, s40, 12
    s_add_u32 s42, s42, {STATE1}
    s_lshl_b32 s43, s40, 10
    s_add_u32 s43, s43, {XCH}
    v_mov_b32 v44, 0
    v_mov_b32 v45, 0
    v_mov_b32 v46, 0
    v_mov_b32 v47, 0
    v_mov_b32 v48, -1
    v_lshlrev_b32 v4, 4, v0
    v_lshlrev_b32 v5, 2, v0
    buffer_store_dwordx4 v[44:47], v4, s[20:23], s42 offen
    buffer_store_dword v48, v5, s[20:23], s43 offen
    v_mov_b32 v50, 0
    v_mov_b32 v51, 0
    v_mov_b32 v52, 0x3f803f80
    s_waitcnt vmcnt(2)""")
    for i in range(32):
        a(f"v_dot2_f32_bf16 v50, v{8+i}, v52, v50\nv_dot2_f32_bf16 v51, v{8+i}, v{8+i}, v51")
    for dpp in ("quad_perm:[1,0,3,2]", "quad_perm:[2,3,0,1]", "row_half_mirror"):
        a(f"s_nop 3\nv_add_f32_dpp v50, v50, v50 {dpp} row_mask:0xf bank_mask:0xf\nv_add_f32_dpp v51, v51, v51 {dpp} row_mask:0xf bank_mask:0xf")
    a(f"""s_nop 1
    v_mul_f32 v50, 0x3b000000, v50
    v_mul_f32 v51, 0x3b000000, v51
    v_fma_f32 v51, -v50, v50, v51
    v_max_f32 v51, 0, v51
    v_add_f32 v51, 0x3727c5ac, v51
    v_rsq_f32 v51, v51
    s_lshl_b32 s42, s40, 7
    s_add_u32 s42, s42, {ST0}
    s_add_u32 s43, s42, 8192
    v_mul_f32 v50, v50, v51
    v_lshlrev_b32 v4, 2, v1
    v_cmp_eq_u32 vcc, 0, v2
    s_and_saveexec_b64 s[44:45], vcc
    buffer_store_dword v51, v4, s[20:23], s42 offen
    buffer_store_dword v50, v4, s[20:23], s43 offen
    s_endpgm""")
    a("K1_PACK:")
    a(f"""s_sub_u32 s40, s2, 320
    v_lshrrev_b32 v1, 6, v0
    v_and_b32 v2, 63, v0
    v_readfirstlane_b32 s41, v1
    v_and_b32 v3, 31, v2
    v_lshrrev_b32 v4, 5, v2
    v_and_b32 v5, 3, v3
    v_lshrrev_b32 v6, 3, v3
    v_lshl_add_u32 v7, v6, 2, v5
    v_bfe_u32 v8, v3, 2, 1
    v_and_b32 v9, 1, v6
    v_lshl_add_u32 v9, v9, 2, v5
    v_lshl_add_u32 v9, v8, 3, v9
    v_and_b32 v10, 16, v3
    v_add_u32 v9, v9, v10
    s_cmp_ge_u32 s40, 48
    s_cbranch_scc1 K1_PWO
    s_mul_i32 s42, s40, 43
    s_lshr_b32 s42, s42, 7
    s_mul_i32 s43, s42, 3
    s_sub_u32 s43, s40, s43
    s_mov_b32 s24, s12
    s_mov_b32 s25, s13
    s_mov_b32 s26, {512*1536*2}
    s_mov_b32 s44, 3072
    s_lshl_b32 s45, s43, 10
    s_lshl_b32 s46, s42, 6
    s_add_u32 s45, s45, s46
    s_mul_i32 s46, s42, 98304
    s_lshl_b32 s47, s43, 10
    s_add_u32 s46, s46, s47
    s_add_u32 s46, s46, {WP}
    s_mov_b32 s47, 3072
    s_branch K1_PGO
    K1_PWO:
    s_sub_u32 s42, s40, 48
    s_mov_b32 s43, 2
    s_mov_b32 s24, s16
    s_mov_b32 s25, s17
    s_mov_b32 s26, {512*512*2}
    s_mov_b32 s44, 1024
    s_lshl_b32 s45, s42, 6
    s_lshl_b32 s46, s42, 15
    s_add_u32 s46, s46, {WOP}
    s_mov_b32 s47, 1024
    K1_PGO:
    s_mov_b32 s27, 0x20000
    s_lshl_b32 s48, s41, 7
    v_add_u32 v9, s48, v9
    v_mul_lo_u32 v9, v9, s44
    v_lshl_add_u32 v9, v4, 4, v9
    s_lshl_b32 s49, s44, 5""")
    for jj in range(4):
        a(f"buffer_load_dwordx4 {vr(16+8*jj,4)}, v9, s[24:27], s45 offen\nbuffer_load_dwordx4 {vr(20+8*jj,4)}, v9, s[24:27], s45 offen offset:32\ns_add_u32 s45, s45, s49")
    a("""s_cmp_eq_u32 s43, 2
    s_cbranch_scc1 K1_PID""")
    srd(a, 28, 14, 16384)
    a("""s_lshl_b32 s50, s42, 10
    v_lshlrev_b32 v10, 9, v8
    v_lshl_add_u32 v10, v4, 8, v10
    v_lshl_add_u32 v10, v7, 1, v10""")
    for i in range(4):
        a(f"buffer_load_ushort v{48+i}, v10, s[28:31], s50 offen offset:{64*i}\nbuffer_load_ushort v{52+i}, v10, s[28:31], s50 offen offset:{64*i+32}")
    a("s_waitcnt vmcnt(0)")
    for i in range(4): a(f"v_lshl_or_b32 v{48+i}, v{52+i}, 16, v{48+i}")
    a("""s_branch K1_PB
    K1_PID:
    v_lshlrev_b32 v10, 3, v4
    v_sub_u32 v10, v7, v10
    v_mov_b32 v11, 0x3f80
    v_mov_b32 v12, 0x3f800000""")
    for i in range(4):
        a(f"""v_cmp_eq_u32 vcc, {2*i}, v10
        v_cmp_eq_u32 s[52:53], {2*i+1}, v10
        s_nop 1
        v_cndmask_b32 v{48+i}, 0, v11, vcc
        v_cndmask_b32 v13, 0, v12, s[52:53]
        v_or_b32 v{48+i}, v{48+i}, v13""")
    a("""K1_PB:
    s_waitcnt vmcnt(0)
    v_cmp_eq_u32 vcc, 0, v8
    v_mov_b32 v60, 0
    v_mov_b32 v61, 0x3f803f80""")
    for i in range(4):
        a(f"v_cndmask_b32 v{52+i}, 0, v{48+i}, vcc\nv_cndmask_b32 v{56+i}, v{48+i}, 0, vcc")
    a("""s_lshl_b32 s48, s41, 3
    s_mul_i32 s48, s48, s47
    s_add_u32 s46, s46, s48
    v_lshlrev_b32 v11, 4, v2""")
    for jj in range(4):
        d = 64 + 16*jj
        a(f"v_mfma_f32_32x32x16_bf16 {vr(d,16)}, {vr(16+8*jj,4)}, v[52:55], 0\nv_mfma_f32_32x32x16_bf16 {vr(d,16)}, {vr(20+8*jj,4)}, v[56:59], {vr(d,16)}")
    a("s_nop 7\ns_nop 3")
    for jj in range(4):
        d = 64 + 16*jj
        for i in range(8): a(f"v_cvt_pk_bf16_f32 v{16+8*jj+i}, v{d+2*i}, v{d+2*i+1}")
        for i in range(8): a(f"v_dot2_f32_bf16 v60, v{16+8*jj+i}, v61, v60")
        a(f"buffer_store_dwordx4 {vr(16+8*jj,4)}, v11, s[20:23], s46 offen\ns_add_u32 s46, s46, s47\nbuffer_store_dwordx4 {vr(20+8*jj,4)}, v11, s[20:23], s46 offen\ns_add_u32 s46, s46, s47")
    a(f"""v_lshlrev_b32 v12, 2, v0
    s_nop 2
    ds_write_b32 v12, v60
    v_lshlrev_b32 v13, 2, v3
    s_waitcnt lgkmcnt(0)
    s_barrier""")
    for i in range(8): a(f"ds_read_b32 v{20+i}, v13 offset:{128*i}")
    a("s_waitcnt lgkmcnt(0)")
    for i in range(1, 8): a(f"v_add_f32 v20, v20, v{20+i}")
    a(f"""s_lshl_b32 s48, s40, 7
    s_add_u32 s48, s48, {CS}
    v_lshl_add_u32 v13, v8, 4, v7
    v_lshlrev_b32 v13, 2, v13
    v_cmp_gt_u32 vcc, 32, v0
    s_and_saveexec_b64 s[44:45], vcc
    s_cbranch_execz K1_DONE
    buffer_store_dword v20, v13, s[20:23], s48 offen
    K1_DONE:
    s_endpgm""")
    return desc(name, 128)
```

```python
from common import *
CP = 4160; UO = 4*CP; CH = UO + 4608; XB = 2*CH
def k2(a, name):
    header(a, name)
    a("""s_cmp_ge_u32 s2, 256
    s_cbranch_scc1 K2_DONE
    s_load_dwordx4 s[4:7], s[0:1], 32
    s_load_dwordx2 s[18:19], s[0:1], 96
    v_lshrrev_b32 v1, 6, v0
    v_and_b32 v2, 63, v0
    v_readfirstlane_b32 s41, v1
    s_and_b32 s40, s2, 7
    s_lshl_b32 s40, s40, 6
    s_lshr_b32 s42, s2, 3
    s_lshl_b32 s42, s42, 1
    s_add_u32 s40, s40, s42
    s_lshr_b32 s42, s41, 1
    s_and_b32 s43, s41, 1
    s_add_u32 s44, s40, s42
    s_lshl_b32 s45, s44, 12
    s_lshl_b32 s46, s40, 1
    s_waitcnt lgkmcnt(0)
    s_add_u32 s6, s6, s46
    s_addc_u32 s7, s7, 0
    s_load_dword s47, s[6:7], 0""")
    stamp_begin(a)
    srd(a, 20, 18, WS_BYTES); srd(a, 24, 4, 2*MB)
    a(f"""s_mul_i32 s48, s42, {CH}
    v_lshlrev_b32 v3, 4, v2
    s_mul_i32 s53, s43, {2*CP}
    s_add_u32 s53, s53, s48
    s_lshl_b32 s54, s43, 2
    s_add_u32 s54, s54, s45
    s_add_u32 m0, s53, 32
    s_add_u32 s55, s54, 2""")
    for i in range(4): a(f"buffer_load_dwordx4 v3, s[24:27], s54 offen offset:{1024*i} lds")
    a(f"s_add_u32 m0, s53, {CP+32}\ns_lshl_b32 s54, s43, 11")
    for i in range(4): a(f"buffer_load_dwordx4 v3, s[24:27], s55 offen offset:{1024*i} lds")
    a(f"s_add_u32 s55, s54, s48\ns_add_u32 m0, s55, {UO}\ns_add_u32 s54, s54, s45")
    for i in range(2): a(f"buffer_load_dwordx4 v3, s[20:23], s54 offen offset:{1024*i} lds")
    a(f"""v_and_b32 v4, 15, v2
    v_lshrrev_b32 v5, 4, v2
    v_add_u32 v8, v4, v5
    v_subrev_u32 v8, 16, v8
    v_lshlrev_b32 v9, 1, v8
    v_cmp_gt_i32 vcc, 0, v8
    v_add_u32 v9, s45, v9
    v_bfrev_b32 v10, 1
    v_cndmask_b32 v9, v9, v10, vcc
    buffer_load_ushort v17, v9, s[24:27], 0 offen""")
    a(f"""v_lshlrev_b32 v6, 5, v4
    v_lshl_add_u32 v6, v5, 3, v6
    s_lshl_b32 s49, s43, 11
    v_add_u32 v6, s49, v6
    v_lshlrev_b32 v7, 1, v6
    s_add_u32 s50, s45, {X0T}
    s_mov_b32 s51, {ST0}
    s_mov_b32 s52, {ST0+8192}""")
    for q in range(4): a(f"buffer_load_dwordx2 {vr(168+2*q,2)}, v6, s[20:23], s50 offen offset:{512*q}")
    for q in range(4): a(f"buffer_load_dwordx4 {vr(176+4*q,4)}, v7, s[20:23], s51 offen offset:{1024*q}")
    for q in range(4): a(f"buffer_load_dwordx4 {vr(192+4*q,4)}, v7, s[20:23], s52 offen offset:{1024*q}")
    a(f"""v_mov_b32 v8, 0
    v_mov_b32 v9, 0
    v_lshlrev_b32 v10, 3, v2
    s_add_u32 s53, s48, {UO+4096}
    v_add_u32 v10, s53, v10
    ds_write_b64 v10, v[8:9]
    v_mul_u32_u24 v11, {CP}, v5
    v_lshl_add_u32 v11, v4, 1, v11
    v_add_u32 v11, s48, v11
    v_add_u32 v8, 1, v4
    v_and_b32 v9, 3, v8
    v_sub_u32 v8, v8, v9
    v_mul_u32_u24 v9, {CP}, v9
    v_lshl_add_u32 v12, v8, 1, v9
    v_lshl_add_u32 v12, v5, 4, v12
    s_lshl_b32 s53, s43, 8
    s_add_u32 s53, s53, s48
    v_add_u32 v12, s53, v12
    v_lshlrev_b32 v13, 4, v5
    v_lshlrev_b32 v14, 5, v4
    v_sub_u32 v13, v13, v14
    s_add_u32 s54, s53, {UO+480}
    v_add_u32 v13, s54, v13
    v_lshrrev_b32 v18, 3, v4
    v_lshlrev_b32 v18, 17, v18
    v_and_b32 v19, 7, v4
    v_lshl_add_u32 v18, v19, 5, v18
    v_lshl_add_u32 v18, v5, 3, v18
    s_lshl_b32 s58, s43, 20
    s_lshl_b32 s59, s44, 8
    s_add_u32 s58, s58, s59
    s_waitcnt vmcnt(12)
    ds_write_b16 v11, v17
    s_waitcnt lgkmcnt(0)
    s_barrier""")
    ACC = 208
    stamp(a, 1)
    a(f"""s_lshl_b32 s60, s2, 13
    s_add_u32 s60, s60, {WP}
    v_lshlrev_b32 v244, 4, v0
    buffer_load_dwordx4 v[240:243], v244, s[20:23], s60 offen
    s_add_u32 s60, s60, 4096
    buffer_load_dwordx4 v[240:243], v244, s[20:23], s60 offen""")
    def reads(rr, b):
        out = []
        order = [("F",0),("G",0)] + [("G",j) for j in range(1,8)] + [("F",x) for x in range(1,8)]
        for k, i in order:
            if k == "F": out.append(f"ds_read_b64 {vr(40+64*b+4*i,2)}, v12 offset:{512*i+64*rr}\nds_read_b64 {vr(42+64*b+4*i,2)}, v12 offset:{512*i+64*rr+8}")
            else: out.append(f"ds_read_b128 {vr(72+64*b+4*i,4)}, v13 offset:{512*(7-i)+64*rr}")
        return out
    for x in reads(0, 0): a(x)
    for rr in range(4):
        b = rr & 1
        nxt = reads(rr+1, b^1) if rr < 3 else []
        cnt = 0
        for aa in range(8):
            for q in range(aa, 8):
                if rr == 0 and aa == 0: a(f"s_waitcnt lgkmcnt({min(15, 21-q)})" if q < 7 else "s_waitcnt lgkmcnt(14)")
                elif (rr == 0 and aa == 1 and q == 1) or (rr > 0 and cnt == 0): a("s_waitcnt lgkmcnt(0)")
                c = "0" if (rr == 0 and aa == 0) else vr(ACC+4*q,4)
                a(f"v_mfma_f32_16x16x32_bf16 {vr(ACC+4*q,4)}, {vr(40+64*b+4*aa,4)}, {vr(72+64*b+4*(q-aa),4)}, {c}")
                cnt += 1
                if nxt and cnt >= 9 and cnt - 9 < 16: a(nxt[cnt-9])
    stamp(a, 2)
    a(f"""s_lshl_b32 s53, s41, 12
    s_add_u32 s53, s53, {XB}
    s_xor_b32 s54, s41, 1
    s_lshl_b32 s54, s54, 12
    s_add_u32 s54, s54, {XB}
    v_add_u32 v14, s53, v3
    v_add_u32 v15, s54, v3
    s_sub_u32 s55, {UO+4088-1536}, s49
    s_add_u32 s55, s55, s48
    v_lshlrev_b32 v16, 5, v4
    v_lshl_add_u32 v16, v5, 3, v16
    v_sub_u32 v16, s55, v16
    s_lshl_b32 s56, s47, 16
    s_and_b32 s57, s47, 0xffff0000
    s_cmp_eq_u32 s42, 0
    s_cselect_b32 s56, s56, s57
    s_mov_b32 s44, 0xffff0000
    s_cmp_eq_u32 s43, 1
    s_cbranch_scc1 K2_X1""")
    for q in range(4): a(f"ds_write_b128 v14, {vr(ACC+16+4*q,4)} offset:{1024*q}")
    a("s_branch K2_X2\nK2_X1:")
    for q in range(4): a(f"ds_write_b128 v14, {vr(ACC+4*q,4)} offset:{1024*q}")
    a("s_nop 1")
    for i in range(16): a(f"v_mov_b32 v{ACC+i}, v{ACC+16+i}")
    a("K2_X2:")
    for q in range(4): a(f"ds_read_b64 {vr(40+2*q,2)}, v16 offset:{512*(3-q)}")
    a("s_waitcnt lgkmcnt(0)\ns_barrier")
    for q in range(4): a(f"ds_read_b128 {vr(48+4*q,4)}, v15 offset:{1024*q}")
    a(f"s_add_u32 s50, s58, {YT}\ns_add_u32 s51, s58, {X1T}\ns_waitcnt vmcnt(0) lgkmcnt(0)")
    stamp(a, 3)
    for q in range(4):
        A = ACC + 4*q; R = 48 + 4*q; U = 40 + 2*q; X = 168 + 2*q; RS = 176 + 4*q; MR = 192 + 4*q
        a(f"""v_and_b32 v100, s44, v{U+1}
        v_lshlrev_b32 v101, 16, v{U+1}
        v_and_b32 v102, s44, v{U}
        v_lshlrev_b32 v103, 16, v{U}""")
        for i in range(4): a(f"v_add_f32 v{A+i}, v{A+i}, v{R+i}\nv_fmac_f32 v{A+i}, s56, v{100+i}")
        Y = 110 + 2*q; O = 120 + 2*q
        a(f"""v_cvt_pk_bf16_f32 v{Y}, v{A}, v{A+1}
        v_cvt_pk_bf16_f32 v{Y+1}, v{A+2}, v{A+3}
        v_lshlrev_b32 v100, 16, v{X}
        v_and_b32 v101, s44, v{X}
        v_lshlrev_b32 v102, 16, v{X+1}
        v_and_b32 v103, s44, v{X+1}
        v_lshlrev_b32 v104, 16, v{Y}
        v_and_b32 v105, s44, v{Y}
        v_lshlrev_b32 v106, 16, v{Y+1}
        v_and_b32 v107, s44, v{Y+1}
        buffer_store_dwordx2 {vr(Y,2)}, v18, s[20:23], s50 offen
        s_add_u32 s50, s50, 0x40000""")
        for i in range(4): a(f"v_fma_f32 v{RS+i}, v{100+i}, v{RS+i}, -v{MR+i}\nv_fmac_f32 v{100+i}, v{RS+i}, v{104+i}")
        a(f"""v_cvt_pk_bf16_f32 v{O}, v100, v101
        v_cvt_pk_bf16_f32 v{O+1}, v102, v103
        buffer_store_dwordx2 {vr(O,2)}, v18, s[20:23], s51 offen
        s_add_u32 s51, s51, 0x40000""")
    stamp_end(a, 4)
    a("K2_DONE:\ns_endpgm")
    return desc(name, 248)
K2_LDS = XB + 16384
```

```python
from common import *
SLOT = 28672
def softmax(a, U, RP, T, OUT):
    P, N, S = T, T+16, T+32
    a(f"v_max3_f32 v{S}, v{U}, v{U+1}, v{U+2}\nv_min3_f32 v{S+2}, v{U}, v{U+1}, v{U+2}")
    for i in range(3, 15, 2): a(f"v_max3_f32 v{S}, v{S}, v{U+i}, v{U+i+1}\nv_min3_f32 v{S+2}, v{S+2}, v{U+i}, v{U+i+1}")
    a(f"v_max_f32 v{S}, v{S}, v{U+15}\nv_min_f32 v{S+2}, v{S+2}, v{U+15}")
    a(f"v_mul_f32 v{S}, v{S}, v{RP}\nv_mul_f32 v{S+2}, v{S+2}, v{RP}")
    for i in range(0, 16, 2):
        a(f"v_pk_fma_f32 {vr(P+i,2)}, {vr(U+i,2)}, {vr(RP,2)}, {vr(S,2)} op_sel_hi:[1,0,0] neg_lo:[0,0,1] neg_hi:[0,0,1]")
        a(f"v_pk_fma_f32 {vr(N+i,2)}, {vr(U+i,2)}, {vr(RP,2)}, {vr(S+2,2)} op_sel_hi:[1,0,0] neg_lo:[1,0,0] neg_hi:[1,0,0]")
    for i in range(32): a(f"v_exp_f32 v{P+i}, v{P+i}")
    a(f"v_pk_add_f32 {vr(S,2)}, {vr(P,2)}, {vr(P+2,2)}\nv_pk_add_f32 {vr(S+2,2)}, {vr(N,2)}, {vr(N+2,2)}")
    for i in range(4, 16, 2): a(f"v_pk_add_f32 {vr(S,2)}, {vr(S,2)}, {vr(P+i,2)}\nv_pk_add_f32 {vr(S+2,2)}, {vr(S+2,2)}, {vr(N+i,2)}")
    a(f"v_add_f32 v{S}, v{S}, v{S+1}\nv_add_f32 v{S+2}, v{S+2}, v{S+3}\nv_rcp_f32 v{S}, v{S}\nv_rcp_f32 v{S+2}, v{S+2}\ns_nop 0")
    for i in range(0, 16, 2):
        a(f"v_pk_mul_f32 {vr(P+i,2)}, {vr(P+i,2)}, {vr(S,2)} op_sel_hi:[1,0]\nv_pk_mul_f32 {vr(N+i,2)}, {vr(N+i,2)}, {vr(S+2,2)} op_sel_hi:[1,0]")
    for i in range(16): a(f"v_cvt_pk_bf16_f32 v{OUT+i}, v{P+2*i}, v{P+2*i+1}")

def k3(a, name, L, XT, XR, STATE):
    header(a, name)
    a(f"""s_cmp_ge_u32 s2, 256
    s_cbranch_scc1 {L}_DONE
    s_load_dwordx2 s[18:19], s[0:1], 96
    v_lshrrev_b32 v1, 6, v0
    v_and_b32 v2, 63, v0
    v_readfirstlane_b32 s41, v1
    s_and_b32 s42, s2, 7
    s_lshr_b32 s43, s2, 3
    s_lshr_b32 s44, s42, 1
    s_lshl_b32 s44, s44, 2
    s_and_b32 s45, s43, 3
    s_add_u32 s44, s44, s45
    s_and_b32 s45, s42, 1
    s_lshl_b32 s45, s45, 3
    s_lshr_b32 s46, s43, 2
    s_add_u32 s45, s45, s46
    v_lshrrev_b32 v3, 4, v2
    v_and_b32 v4, 15, v2
    v_lshlrev_b32 v5, 2, v3
    v_xor_b32 v5, v5, v4
    v_lshlrev_b32 v5, 4, v5
    v_lshl_add_u32 v5, v3, 8, v5
    v_lshlrev_b32 v6, 4, v2
    v_lshrrev_b32 v7, 5, v2
    v_and_b32 v8, 31, v2
    s_lshl_b32 s47, s45, 5
    s_lshl_b32 s48, s41, 4
    s_add_u32 s47, s47, s48
    s_lshl_b32 s48, s44, 17
    s_add_u32 s48, s48, {XT}
    s_lshl_b32 s49, s45, 1
    s_add_u32 s49, s49, s41
    s_mul_i32 s50, s45, 98304
    s_add_u32 s50, s50, {WP}
    s_lshl_b32 s51, s41, 12
    s_mul_i32 s52, s41, 3072
    s_add_u32 s52, s52, 16384
    s_mul_i32 s53, s45, 384
    s_add_u32 s53, s53, {CS}
    v_lshlrev_b32 v9, 6, v7
    s_waitcnt lgkmcnt(0)""")
    stamp_begin(a)
    srd(a, 20, 18, WS_BYTES)
    CSR = 196
    a(f"s_cmp_lt_u32 s41, 4\ns_cbranch_scc1 {L}_C")
    a(f"""s_sub_u32 s41, s41, 4
    s_lshl_b32 s41, s41, 1
    s_lshl_b32 s47, s45, 5
    s_lshl_b32 s51, s41, 4
    s_add_u32 s47, s47, s51
    s_lshl_b32 s49, s45, 1
    s_add_u32 s49, s49, s41
    s_lshl_b32 s51, s41, 12
    s_mul_i32 s52, s41, 3072
    s_add_u32 s52, s52, 16384""")
    def dma(c):
        sl = (c % 5) * SLOT
        for h in range(2):
            a(f"s_add_u32 s54, s47, {64*c+16*h}\ns_and_b32 s54, s54, 511\ns_lshl_b32 s54, s54, 8\ns_add_u32 m0, s51, {sl+4096*h}\ns_add_u32 s54, s54, s48")
            for i in range(4): a(f"buffer_load_dwordx4 v5, s[20:23], s54 offen offset:{1024*i} lds")
            a(f"s_add_u32 s54, s49, {4*c+h}\ns_and_b32 s54, s54, 31\ns_mul_i32 s54, s54, 3072\ns_add_u32 m0, s52, {sl+3072*h}\ns_add_u32 s54, s54, s50")
            for t in range(3): a(f"buffer_load_dwordx4 v6, s[20:23], s54 offen offset:{1024*t} lds")
    for c in range(4): dma(c)
    lw = [42, 42, 42, 42, 44, 30, 16, 1]
    for c in range(8):
        a(f"s_waitcnt vmcnt({lw[c]})\ns_barrier")
        if c <= 3: dma(c+4)
        if c == 3: a(f"s_mov_b32 m0, {5*SLOT}\ns_nop 0\nbuffer_load_dwordx4 v6, s[20:23], s53 offen lds\ns_lshl_b32 s54, s2, 11\ns_lshl_b32 s55, s41, 9\ns_add_u32 s54, s54, s55\ns_add_u32 s54, s54, {WOP}\nbuffer_load_dwordx4 v[200:203], v6, s[20:23], s54 offen")
    a("s_lshr_b32 s41, s41, 1")
    a(f"""v_and_b32 v5, 15, v2
    v_lshrrev_b32 v6, 2, v5
    v_lshl_add_u32 v6, v7, 3, v6
    v_mul_u32_u24 v6, 336, v6
    v_bfe_u32 v9, v2, 4, 1
    v_lshl_add_u32 v6, v9, 5, v6
    v_and_b32 v5, 3, v5
    v_lshl_add_u32 v6, v5, 3, v6
    s_lshl_b32 s55, s41, 6
    v_add_u32 v6, s55, v6
    s_barrier""")
    D = 36
    def srd_(ks):
        f = 128 + 8*ks
        for j in range(2):
            a(f"ds_read_b64_tr_b16 {vr(f+2*j,2)}, v6 offset:{5376*ks+1344*j+128}")
            a(f"ds_read_b64_tr_b16 {vr(f+4+2*j,2)}, v6 offset:{5376*ks+1344*j}")
    for ks in range(3): srd_(ks)
    for ks in range(8):
        f = 128 + 8*ks
        a(f"s_waitcnt lgkmcnt({4*min(2, 7-ks)})")
        a(f"v_mfma_f32_32x32x16_bf16 {vr(D,16)}, {vr(f,4)}, {vr(f+4,4)}, {'0' if ks == 0 else vr(D,16)}")
        if ks + 3 < 8: srd_(ks+3)
    a(f"""v_lshlrev_b32 v5, 2, v8
    v_lshl_add_u32 v5, v7, 9, v5
    s_lshl_b32 s55, s45, 1
    s_add_u32 s55, s55, s41
    s_mul_i32 s55, s55, 2176
    s_add_u32 s55, s55, {STATE}
    s_nop 7""")
    for r in range(8): a(f"buffer_atomic_add_f32 v{D+r}, v5, s[20:23], s55 offen offset:{((r&3)+8*(r>>2))*128}")
    a(f"""s_mov_b32 exec_hi, 0
    buffer_atomic_add_f32 v{D+8}, v5, s[20:23], s55 offen offset:2048
    s_endpgm
    {L}_C:""")
    stamp(a, 14)
    a("""v_lshrrev_b32 v16, 2, v4
    v_lshl_add_u32 v17, v7, 3, v16
    v_lshlrev_b32 v17, 8, v17
    v_xor_b32 v16, s41, v16
    v_lshl_add_u32 v17, v16, 6, v17
    v_and_b32 v16, 1, v3
    v_lshl_add_u32 v17, v16, 5, v17
    v_and_b32 v16, 3, v4
    v_lshl_add_u32 v10, v16, 3, v17""")
    a(f"v_add_u32 v11, {2*SLOT}, v10\nv_add_u32 v12, {4*SLOT}, v10\nv_add_u32 v13, 16384, v6\nv_add_u32 v14, {2*SLOT+16384}, v6\nv_add_u32 v15, {4*SLOT+16384}, v6")
    a(f"v_mov_b32 v4, 0x3f803f80\nv_mov_b32 v5, 0x3f803f80\nv_add_u32 v9, {5*SLOT}, v9")
    ACC = 20
    EXP = 244
    def fr(c, i): return 64 + 4 + 64*(c & 1) + 16*i
    def reads(c):
        sl = c % 5; b = sl // 2; o = (sl & 1) * SLOT; out = []
        for i in range(4):
            f = fr(c, i)
            out.append(f"ds_read_b64_tr_b16 {vr(f,2)}, v{10+b} offset:{o+4096*i}")
            out.append(f"ds_read_b64_tr_b16 {vr(f+2,2)}, v{10+b} offset:{o+4096*i+1024}")
            for t in range(3): out.append(f"ds_read_b128 {vr(f+4+4*t,4)}, v{13+b} offset:{o+3072*i+1024*t}")
        return out
    def compute(c, rd):
        k = 0
        for i in range(4):
            f = fr(c, i)
            for t in (1, 2, 0):
                cc = "0" if (c == 0 and i == 0) else vr(ACC+16*t,16)
                a(f"v_mfma_f32_32x32x16_bf16 {vr(ACC+16*t,16)}, {vr(f+4+4*t,4)}, {vr(f,4)}, {cc}")
                for _ in range(2):
                    if k < len(rd): a(rd[k]); k += 1
                z = c == 0 and i == 0
                def st(acc, A, j, zz): a(f"v_mfma_f32_4x4x4_16b_bf16 {vr(acc,4)}, {vr(A,2)}, {vr(f+j,2)}, {'0' if zz else vr(acc,4)}")
                if t == 1: st(252, f, 0, z)
                if t == 2: st(16, 4, 0, z); st(252, f+2, 2, False)
                if t == 0: st(16, 4, 2, False)
            if c == 0 and i < 2:
                for j in range(4): a(f"v_mov_b32 v{EXP+4*i+j}, v{f+j}")
    assert fr(1,3)+15 < CSR
    for c in range(8):
        a(f"s_waitcnt lgkmcnt(0)\ns_barrier")
        stamp(a, 1+c)
        if c == 0:
            for x in reads(0): a(x)
        else: compute(c-1, reads(c))
    a("s_waitcnt lgkmcnt(0)")
    compute(7, [f"ds_read_b128 {vr(CSR+16*t+4*i,4)}, v9 offset:{128*t+16*i}" for t in (2, 1, 0) for i in range(4)])
    stamp(a, 9)
    a(f"""s_nop 7
    v_lshlrev_b32 v3, 5, v8
    v_lshl_add_u32 v3, v7, 4, v3
    s_lshl_b32 s54, s44, 17
    s_lshl_b32 s55, s41, 15
    s_add_u32 s54, s54, s55
    s_lshl_b32 s55, s45, 11
    s_add_u32 s54, s54, s55
    s_add_u32 s54, s54, {XR}
    buffer_store_dwordx4 {vr(EXP,4)}, v3, s[20:23], s54 offen
    buffer_store_dwordx4 {vr(EXP+4,4)}, v3, s[20:23], s54 offen offset:1024
    v_and_b32 v4, 3, v2
    v_cmp_eq_u32 vcc, 1, v4
    v_cndmask_b32 v17, v252, v253, vcc
    v_cmp_eq_u32 vcc, 2, v4
    v_cndmask_b32 v17, v17, v254, vcc
    v_cmp_eq_u32 vcc, 3, v4
    v_cndmask_b32 v17, v17, v255, vcc
    v_mov_b32 v18, 0x3f803f80
    v_mov_b32 v10, v16
    v_mov_b32 v11, v17
    s_nop 1
    v_permlane32_swap_b32 v10, v16
    v_permlane32_swap_b32 v11, v17
    s_nop 1
    v_add_f32 v10, v10, v16
    v_add_f32 v11, v11, v17
    v_mul_f32 v10, 0x3b000000, v10
    v_mul_f32 v11, 0x3b000000, v11
    v_fma_f32 v11, -v10, v10, v11
    v_max_f32 v11, 0, v11
    v_add_f32 v11, 0x3727c5ac, v11
    v_rsq_f32 v12, v11
    s_mul_i32 s55, s41, {32*336}
    v_mul_u32_u24 v4, 336, v8
    v_lshl_add_u32 v4, v7, 6, v4
    v_add_u32 v4, s55, v4
    v_mul_f32 v14, 0x3fb8aa3b, v12
    s_waitcnt lgkmcnt(0)""")
    def corr(t):
        for i in range(0, 16, 2):
            a(f"v_pk_fma_f32 {vr(ACC+16*t+i,2)}, {vr(CSR+16*t+i,2)}, v[10:11], {vr(ACC+16*t+i,2)} op_sel_hi:[1,0,1] neg_lo:[0,1,0] neg_hi:[0,1,0]")
    T = 68; O = 112
    corr(2)
    for i in range(0, 16, 2): a(f"v_pk_mul_f32 {vr(ACC+32+i,2)}, {vr(ACC+32+i,2)}, v[12:13] op_sel_hi:[1,0]")
    for i in range(8): a(f"v_cvt_pk_bf16_f32 v{128+i}, v{ACC+32+2*i}, v{ACC+33+2*i}")
    for i in range(4): a(f"v_mov_b32 v{136+i}, v18")
    a("ds_write_b128 v4, v[128:131] offset:128\nds_write_b128 v4, v[132:135] offset:144\nds_write_b128 v4, v[136:139] offset:160\nds_write_b128 v4, v[136:139] offset:176")
    corr(1)
    softmax(a, ACC+16, 14, T, O)
    for i in range(4): a(f"ds_write_b128 v4, {vr(O+4*i,4)} offset:{16*i}")
    a("s_waitcnt lgkmcnt(0)\ns_barrier")
    stamp(a, 10)
    stamp(a, 11)
    corr(0)
    softmax(a, ACC, 14, T, O)
    a(f"""v_lshlrev_b32 v5, 4, v8
    v_lshl_add_u32 v5, v7, 11, v5
    s_lshl_b32 s55, s44, 2
    s_add_u32 s55, s55, s41
    s_lshl_b32 s55, s55, 16
    s_lshl_b32 s56, s45, 12
    s_add_u32 s55, s55, s56
    s_add_u32 s55, s55, {PQ}""")
    for i in range(4): a(f"buffer_store_dwordx4 {vr(O+4*i,4)}, v5, s[20:23], s55 offen offset:{512*i}")
    stamp(a, 12)
    stamp_end(a, 13)
    a(f"{L}_DONE:\ns_endpgm")
    return desc(name, 256)
K3_LDS = 5*SLOT + 1024
```

```python
from common import *
SOFF = 43008
def k4(a, name, L, XR, STATE, final):
    header(a, name)
    a(f"""s_cmp_ge_u32 s2, 256
    s_cbranch_scc1 {L}_DONE
    s_load_dwordx2 s[18:19], s[0:1], 96
    s_load_dwordx2 s[16:17], s[0:1], 80
    v_lshrrev_b32 v1, 6, v0
    v_and_b32 v2, 63, v0
    v_readfirstlane_b32 s41, v1
    s_and_b32 s42, s2, 7
    s_lshr_b32 s43, s2, 3
    s_lshl_b32 s44, s42, 3
    s_lshr_b32 s45, s43, 2
    s_add_u32 s44, s44, s45
    s_and_b32 s45, s43, 3
    v_lshlrev_b32 v3, 4, v2
    v_lshrrev_b32 v7, 5, v2
    v_and_b32 v8, 31, v2
    v_bfe_u32 v4, v8, 2, 1
    v_bfe_u32 v5, v8, 3, 1
    v_and_b32 v6, 3, v8
    v_lshl_add_u32 v6, v5, 2, v6
    v_lshl_add_u32 v6, v4, 3, v6
    v_cmp_gt_u32 vcc, 16, v8
    v_lshlrev_b32 v9, 10, v8
    v_lshl_add_u32 v9, v7, 5, v9
    v_cndmask_b32 v6, 16, v6, vcc
    v_and_b32 v4, 7, v6
    v_lshlrev_b32 v6, 7, v6
    v_lshlrev_b32 v5, 5, v7
    s_mul_i32 s56, s41, {8*2176}
    s_add_u32 s56, s56, {SOFF}
    v_add_u32 v6, s56, v6
    v_lshrrev_b32 v60, 3, v2
    v_xor_b32 v60, v60, v2
    v_and_b32 v60, 7, v60
    v_and_b32 v61, 56, v2
    v_or_b32 v60, v60, v61
    v_lshlrev_b32 v63, 4, v60
    s_lshl_b32 s46, s44, 16
    s_lshl_b32 s47, s41, 14
    s_add_u32 s46, s46, s47
    s_add_u32 s46, s46, {PQ}
    s_mul_i32 s47, s41, {8*2176}
    s_add_u32 s47, s47, {STATE}
    s_lshl_b32 s48, s45, 2
    s_add_u32 s48, s48, s41
    s_lshl_b32 s49, s48, 6
    s_lshl_b32 s48, s48, 15
    s_add_u32 s48, s48, {WOP}
    s_lshl_b32 s50, s44, 15
    s_add_u32 s49, s49, s50
    s_lshl_b32 s51, s45, 13
    s_add_u32 s50, s50, s51
    s_lshl_b32 s51, s41, 11
    s_add_u32 s50, s50, s51
    s_add_u32 s50, s50, {XR}
    v_lshlrev_b32 v11, 5, v2
    s_lshl_b32 s51, s41, 13
    v_add_u32 v10, s51, v3
    s_waitcnt lgkmcnt(0)""")
    stamp_begin(a)
    srd(a, 20, 18, WS_BYTES)
    if final: srd(a, 24, 16, 2*MB)
    q = []
    def ld(tag, txt): q.append(tag); a(txt)
    def wait(tags):
        idx = max(i for i, t in enumerate(q) if t in tags)
        a(f"s_waitcnt vmcnt({min(63, len(q)-1-idx)})")
    PQR = lambda h: 64 + 8*h
    WOR = lambda k: 128 + 4*k
    TMP, D0, RES, SF, YR = 12, 20, 52, 240, 88
    a("s_mov_b32 m0, s56\ns_nop 0")
    ns = 0
    for h in range(8):
        while ns <= (17*h+16)//8:
            if ns and ns % 4 == 0: a("s_add_u32 s47, s47, 4096\ns_add_u32 m0, m0, 4096\ns_nop 0")
            ld(("h",h), f"buffer_load_dwordx4 v63, s[20:23], s47 offen offset:{1024*(ns%4)} lds"); ns += 1
        if h and h % 2 == 0: a("s_add_u32 s46, s46, 4096")
        for s_ in range(2): ld(("h",h), f"buffer_load_dwordx4 {vr(PQR(h)+4*s_,4)}, v3, s[20:23], s46 offen offset:{2048*(h&1)+1024*s_}")
    ld("res", f"buffer_load_dwordx4 {vr(RES,4)}, v11, s[20:23], s50 offen")
    ld("res", f"buffer_load_dwordx4 {vr(RES+4,4)}, v11, s[20:23], s50 offen offset:16")
    stamp(a, 14)
    wo_reg = {}
    def post(h):
        D = D0 + 16*(h & 1)
        a(f"v_add_f32 v11, 0x358637bd, v{D+8}\nv_rcp_f32 v11, v11\ns_nop 0")
        for i in range(8): a(f"v_mul_f32 v{D+i}, v{D+i}, v11")
        for i in range(4): a(f"v_cvt_pk_bf16_f32 v{D+8+i}, v{D+2*i}, v{D+2*i+1}")
        a(f"ds_write_b128 v10, {vr(D+8,4)} offset:{1024*h}")
    def sread(h):
        a(f"v_add_u32 v1, {h}, v4\nv_and_b32 v1, 7, v1\nv_lshlrev_b32 v1, 4, v1\nv_xor_b32 v1, v1, v5\nv_add_u32 v1, v1, v6")
        a("v_xor_b32 v60, 16, v1\nv_xor_b32 v61, 64, v1\nv_xor_b32 v62, 80, v1")
        wait([("h",h)])
        for i, r in enumerate((1, 60, 61, 62)): a(f"ds_read_b128 {vr(SF+4*i,4)}, v{r} offset:{2176*h}")
    nwo = 0
    sread(0)
    for h in range(8):
        b = PQR(h); D = D0 + 16*(h & 1)
        a(f"s_waitcnt lgkmcnt({1 if h > 1 else 0})")
        if h in (0, 4): stamp(a, 1 + h//4)
        for i in range(8): a(f"v_cvt_pk_bf16_f32 v{TMP+i}, v{SF+2*i}, v{SF+2*i+1}")
        a("s_nop 1")
        a(f"v_mfma_f32_32x32x16_bf16 {vr(D,16)}, {vr(TMP,4)}, {vr(b,4)}, 0")
        a(f"v_mfma_f32_32x32x16_bf16 {vr(D,16)}, {vr(TMP+4,4)}, {vr(b+4,4)}, {vr(D,16)}")
        for j in range(4):
            wo_reg[nwo] = WOR(nwo)
            if nwo % 4 == 0 and nwo: a("s_add_u32 s48, s48, 4096")
            ld(("wo",nwo), f"buffer_load_dwordx4 {vr(WOR(nwo),4)}, v3, s[20:23], s48 offen offset:{1024*(nwo%4)}")
            nwo += 1
        if h == 7 and not final:
            a(f"""v_lshrrev_b32 v4, 2, v0
            v_and_b32 v5, 3, v0
            v_lshlrev_b32 v4, 8, v4
            v_lshl_add_u32 v4, v5, 4, v4
            v_add_u32 v5, 0x4000, v4
            s_lshl_b32 s52, s45, 15
            s_lshr_b32 s53, s44, 2
            s_lshl_b32 s53, s53, 17
            s_add_u32 s52, s52, s53
            s_and_b32 s53, s44, 3
            s_lshl_b32 s53, s53, 6
            s_add_u32 s52, s52, s53
            s_add_u32 s53, s52, {YT}""")
            ld("y", f"buffer_load_dwordx4 {vr(YR,4)}, v4, s[20:23], s53 offen")
            ld("y", f"buffer_load_dwordx4 {vr(YR+4,4)}, v5, s[20:23], s53 offen")
        if h < 7: sread(h+1)
        if h > 0: post(h-1)
        else: a("s_nop 3")
    a("s_nop 7")
    post(7)
    a("s_waitcnt lgkmcnt(0)\ns_barrier")
    OF = 64; ACC = 20
    stamp(a, 3)
    for k in range(4): a(f"ds_read_b128 {vr(OF+4*k,4)}, v3 offset:{1024*k}")
    for k in range(32):
        wait([("wo",k)])
        a(f"s_waitcnt lgkmcnt({min(3, 31-k)})")
        a(f"v_mfma_f32_32x32x16_bf16 {vr(ACC,16)}, {vr(wo_reg[k],4)}, {vr(OF+4*(k%6),4)}, {'0' if k == 0 else vr(ACC,16)}")
        if k + 4 < 32: a(f"ds_read_b128 {vr(OF+4*((k+4)%6),4)}, v3 offset:{1024*(k+4)}")
    stamp(a, 4)
    a("s_mov_b32 s54, 0xffff0000")
    for i in range(8): a(f"v_lshlrev_b32 v{64+2*i}, 16, v{RES+i}\nv_and_b32 v{65+2*i}, s54, v{RES+i}")
    for i in range(16): a(f"v_add_f32 v{64+i}, v{64+i}, v{ACC+i}")
    for i in range(8): a(f"v_cvt_pk_bf16_f32 v{80+i}, v{64+2*i}, v{65+2*i}")
    if final:
        a("buffer_store_dwordx4 v[80:83], v9, s[24:27], s49 offen\nbuffer_store_dwordx4 v[84:87], v9, s[24:27], s49 offen offset:16")
        stamp_end(a, 5)
        a(f"{L}_DONE:\ns_endpgm")
        return desc(name, 256)
    a("v_mov_b32 v12, 0\nv_mov_b32 v13, 0\nv_mov_b32 v14, 0x3f803f80")
    for i in range(8): a(f"v_dot2_f32_bf16 v12, v{80+i}, v14, v12\nv_dot2_f32_bf16 v13, v{80+i}, v{80+i}, v13")
    a(f"""s_lshl_b32 s55, s41, 11
    s_add_u32 s55, s55, 32768
    v_lshlrev_b32 v15, 1, v8
    v_lshl_add_u32 v15, v7, 10, v15
    v_add_u32 v15, s55, v15
    v_mov_b32 v16, v12
    v_mov_b32 v17, v13
    s_lshl_b32 s55, s41, 8
    s_add_u32 s55, s55, 40960
    v_permlane32_swap_b32 v16, v12
    v_permlane32_swap_b32 v17, v13
    v_lshlrev_b32 v18, 3, v8
    v_add_u32 v19, s55, v18
    v_add_f32 v12, v12, v16
    v_add_f32 v13, v13, v17
    ds_write_b64 v19, v[12:13]""")
    for i in range(8): a(f"ds_write_b16 v15, v{80+i} offset:{128*i}\nds_write_b16_d16_hi v15, v{80+i} offset:{128*i+64}")
    a(f"""v_lshlrev_b32 v20, 4, v0
    v_and_b32 v21, 3, v0
    v_lshlrev_b32 v21, 5, v21
    s_waitcnt lgkmcnt(0)
    s_barrier
    ds_read_b128 v[24:27], v20 offset:32768
    ds_read_b128 v[28:31], v20 offset:36864
    s_cmp_lg_u32 s41, 0
    s_cbranch_scc1 {L}_W""")
    stamp(a, 5)
    for w in range(4): a(f"ds_read_b64 {vr(32+2*w,2)}, v18 offset:{40960+256*w}")
    a(f"""s_lshl_b32 s55, s44, 10
    s_add_u32 s55, s55, {XCH}
    s_lshl_b32 s56, s45, 8
    s_add_u32 s56, s56, s55
    v_lshl_add_u32 v19, v7, 8, v18
    s_mov_b32 s57, 0x40000
    s_waitcnt lgkmcnt(0)
    v_pk_add_f32 v[32:33], v[32:33], v[34:35]
    v_pk_add_f32 v[36:37], v[36:37], v[38:39]
    v_pk_add_f32 v[32:33], v[32:33], v[36:37]
    s_mov_b32 exec_hi, 0
    buffer_store_dwordx2 v[32:33], v18, s[20:23], s56 offen sc0 sc1
    s_mov_b32 exec_hi, -1
    {L}_POLL:
    buffer_load_dwordx2 v[34:35], v19, s[20:23], s55 offen sc0 sc1
    buffer_load_dwordx2 v[36:37], v19, s[20:23], s55 offen offset:512 sc0 sc1
    s_sub_u32 s57, s57, 1
    s_cmp_eq_u32 s57, 0
    s_cbranch_scc1 {L}_GO
    s_waitcnt vmcnt(0)
    v_cmp_eq_u32 vcc, -1, v34
    v_cmp_eq_u32 s[58:59], -1, v35
    v_cmp_eq_u32 s[60:61], -1, v36
    v_cmp_eq_u32 s[62:63], -1, v37
    s_or_b64 s[58:59], s[58:59], vcc
    s_or_b64 s[60:61], s[60:61], s[62:63]
    s_or_b64 s[58:59], s[58:59], s[60:61]
    s_cbranch_scc1 {L}_POLL
    {L}_GO:
    s_waitcnt vmcnt(0)
    v_pk_add_f32 v[34:35], v[34:35], v[36:37]
    s_nop 0
    v_mov_b32 v36, v34
    v_mov_b32 v37, v35
    s_nop 1
    v_permlane32_swap_b32 v36, v34
    v_permlane32_swap_b32 v37, v35
    s_nop 1
    v_add_f32 v34, v34, v36
    v_add_f32 v35, v35, v37
    v_mul_f32 v34, 0x3b000000, v34
    v_mul_f32 v35, 0x3b000000, v35
    v_fma_f32 v35, -v34, v34, v35
    v_max_f32 v35, 0, v35
    v_add_f32 v35, 0x3727c5ac, v35
    v_rsq_f32 v35, v35
    v_lshlrev_b32 v36, 2, v8
    v_mul_f32 v34, v34, v35
    ds_write_b32 v36, v35 offset:41984
    ds_write_b32 v36, v34 offset:42112
    s_waitcnt lgkmcnt(0)
    {L}_W:
    s_barrier
    ds_read_b128 v[32:35], v21 offset:41984
    ds_read_b128 v[36:39], v21 offset:42000
    ds_read_b128 v[40:43], v21 offset:42112
    ds_read_b128 v[44:47], v21 offset:42128
    s_add_u32 s53, s52, {X3T}
    s_waitcnt vmcnt(0) lgkmcnt(0)""")
    stamp(a, 6)
    for p in range(2):
        for i in range(4):
            X = 24 + 4*p + i; Y = YR + 4*p + i
            a(f"""v_lshlrev_b32 v48, 16, v{X}
            v_and_b32 v49, s54, v{X}
            v_lshlrev_b32 v50, 16, v{Y}
            v_and_b32 v51, s54, v{Y}
            v_pk_fma_f32 v[52:53], v[48:49], {vr(32+2*i,2)}, {vr(40+2*i,2)} neg_lo:[0,0,1] neg_hi:[0,0,1]
            v_pk_fma_f32 v[48:49], v[52:53], v[50:51], v[48:49]
            v_cvt_pk_bf16_f32 v{64+4*p+i}, v48, v49""")
        a(f"buffer_store_dwordx4 {vr(64+4*p,4)}, v{4+p}, s[20:23], s53 offen")
    stamp_end(a, 7)
    a(f"{L}_DONE:\ns_endpgm")
    return desc(name, 256)
K4_LDS = SOFF + 32*2176
```

```python
from common import *
import k1, k2, k3, k4, sys
src = open('cdna_kernels/' + NAME + '.s.ref').read().split('\n')
hdr = [l for l in src if l.startswith(';') and '@launch' not in l and 'Override' not in l and 'grid=ceil' not in l]
a = Asm(); d = []
n1 = NAME + "_kernel"
d.append(k1.k1(a, n1))
d.append(k2.k2(a, "conv_kernel"))
d.append(k3.k3(a, "qkv1_kernel", "K3", X1T, XR1, STATE1))
d.append(k4.k4(a, "proj1_kernel", "K4", XR1, STATE1, False))
d.append(k3.k3(a, "qkv2_kernel", "K5", X3T, XR3, STATE2))
d.append(k4.k4(a, "proj2_kernel", "K6", XR3, STATE2, True))
L = [(n1, 384, 16384), ("conv_kernel", 256, k2.K2_LDS), ("qkv1_kernel", 256, k3.K3_LDS), ("proj1_kernel", 256, k4.K4_LDS),
     ("qkv2_kernel", 256, k3.K3_LDS), ("proj2_kernel", 256, k4.K4_LDS)]
out = "\n".join(hdr) + "\n" + "".join(f"; @launch kernel={n} grid=({g},1,1) block=({384 if 'qkv' in n else 256},1,1) lds={l}\n" for n, g, l in L)
out += '.amdgcn_target "amdgcn-amd-amdhsa--gfx950"\n.text\n' + a.text() + '.section .rodata,"a"\n' + "".join(d)
open(sys.argv[1] if len(sys.argv) > 1 else 'cdna_kernels/' + NAME + '.s', 'w').write(out)
```
